```python
import torch

def _softmax(x, axis=-1):
    return torch.softmax(x, dim=axis)

def _gelu(x):
    return torch.nn.functional.gelu(x, approximate='tanh')

def _silu(x):
    return torch.nn.functional.silu(x)

def _sigmoid(x):
    return torch.sigmoid(x)

def _layernorm(x, axis=-1, eps=1e-05):
    m = x.mean(dim=axis, keepdim=True)
    v = x.var(dim=axis, keepdim=True, unbiased=False)
    return (x - m) / torch.sqrt(v + eps)

def _scatter_add(tgt, idx, src, axis=0):
    return tgt.clone().index_add_(axis, idx, src)

def _segment_sum(src, seg, n):
    out = torch.zeros((n,) + src.shape[1:], dtype=src.dtype)
    return out.index_add_(0, seg, src)

def _pad(x, pw):
    flat = tuple((v for pair in reversed(pw) for v in pair))
    return torch.nn.functional.pad(x, flat)
kernel_name = 'adaLN_cond__sliding_block__glu_gated_glu__prompt'

def setup_inputs():

    _w = lambda a: (lambda t: t.to(torch.bfloat16) if t.is_floating_point() else t)(torch.as_tensor(a))

    def _A_setup():
        B, S, D = (1, 2048, 512)
        return {'x': _w((lambda *s: torch.randn(*s, dtype=torch.bfloat16) * 0.05)(B, S, D)), 'wqkv': _w((lambda *s: torch.randn(*s, dtype=torch.bfloat16) * 0.05)(D, 3 * D)), 'wo': _w((lambda *s: torch.randn(*s, dtype=torch.bfloat16) * 0.05)(D, D))}
    _A_in = _A_setup()

    def _B_setup():
        B, S, D, F = (1, 2048, 512, 1376)
        return {'x': _w((lambda *s: torch.randn(*s, dtype=torch.bfloat16) * 0.05)(B, S, D)), 'w_gate': _w((lambda *s: torch.randn(*s, dtype=torch.bfloat16) * 0.05)(D, F)), 'w_up': _w((lambda *s: torch.randn(*s, dtype=torch.bfloat16) * 0.05)(D, F)), 'w_down': _w((lambda *s: torch.randn(*s, dtype=torch.bfloat16) * 0.05)(F, D))}
    _B_in = _B_setup()
    return {'A_x': _A_in['x'], 'A_wqkv': _A_in['wqkv'], 'A_wo': _A_in['wo'], 'B_x': _B_in['x'], 'B_w_gate': _B_in['w_gate'], 'B_w_up': _B_in['w_up'], 'B_w_down': _B_in['w_down'], 'c': _w((lambda *s: torch.randn(*s, dtype=torch.bfloat16) * 0.1)(1, 512) * 8.0), 'w_mod': _w((lambda *s: torch.randn(*s, dtype=torch.bfloat16) * 0.1)(512, 6 * 512) * 512 ** (-0.5) * 8.0)}

def reference(A_x, A_wqkv, A_wo, B_x, B_w_gate, B_w_up, B_w_down, c, w_mod):

    def _A_ref(x, wqkv, wo):
        B, S, D = x.shape
        H = 32
        Dh = D // H
        W = 256
        qkv = (lambda x, *d: x.permute(*d))((x @ wqkv).reshape(B, S, 3, H, Dh), 2, 0, 3, 1, 4)
        q, k, v = (qkv[0], qkv[1], qkv[2])
        scores = torch.einsum('bhqd,bhkd->bhqk', q, k) * Dh ** (-0.5)
        idx = torch.arange(S)
        mask = (idx[:, None] - idx[None, :] >= 0) & (idx[:, None] - idx[None, :] < W)
        scores = torch.where(mask[None, None], scores, -1000000000.0)
        p = _softmax(scores, axis=-1)
        o = torch.einsum('bhqk,bhkd->bhqd', p, v)
        return (lambda x, *d: x.permute(*d))(o, 0, 2, 1, 3).reshape(B, S, D) @ wo

    def _B_ref(x, w_gate, w_up, w_down):
        g = torch.einsum('bsd,df->bsf', x, w_gate)
        u = torch.einsum('bsd,df->bsf', x, w_up)
        h = _sigmoid(g) * u
        return torch.einsum('bsf,fd->bsd', h, w_down)
    x = A_x
    mod = (_silu(c) @ w_mod).reshape(c.shape[0], 6, 1, -1)
    sa, ca, ga, sb, cb, gb = (mod[:, 0].clone(), mod[:, 1].clone(), mod[:, 2].clone(), mod[:, 3].clone(), mod[:, 4].clone(), mod[:, 5].clone())
    h = _layernorm(x, axis=-1) * (1 + ca) + sa
    x = x + ga * _A_ref(h, A_wqkv, A_wo)
    h = _layernorm(x, axis=-1) * (1 + cb) + sb
    x = x + gb * _B_ref(h, B_w_gate, B_w_up, B_w_down)
    return x
```

```python
import re
REG = re.compile(r'\b([vas])\[(\d+):(\d+)\]|\b([vas])(\d+)\b|\b(vcc|m0|exec)\b')
def regs(tok):
    out = set()
    for m in REG.finditer(tok):
        if m.group(1): out |= {(m.group(1), i) for i in range(int(m.group(2)), int(m.group(3)) + 1)}
        elif m.group(4): out.add((m.group(4), int(m.group(5))))
        else: out.add((m.group(6), 0))
    return out
TRANS = ('v_exp_', 'v_log_', 'v_rcp_', 'v_rsq_', 'v_sqrt_')
class Ins:
    def __init__(s, text):
        s.text = text; t = text.split(';')[0].strip(); s.op = t.split(' ')[0] if t else ''
        s.label = t.endswith(':'); rest = t[len(s.op):]
        ops = [o.strip() for o in re.split(r',(?![^\[]*\])', rest)] if rest.strip() else []
        s.ops = ops; op = s.op
        s.mfma = op.startswith('v_mfma'); s.valu = op.startswith('v_') and not s.mfma
        s.vmem = op.startswith(('buffer_', 'global_')); s.ds = op.startswith('ds_'); s.salu = op.startswith('s_')
        s.store = s.vmem and 'store' in op
        s.dma = s.vmem and re.search(r'\blds\b', t) is not None
        allr = [regs(o) for o in ops]
        s.w = set(); s.r = set()
        if s.mfma: s.w = allr[0]; s.ab = allr[1] | allr[2]; s.c = allr[3]; s.r = s.ab | s.c
        elif s.valu:
            s.w = set(allr[0]); s.r = set().union(*allr[1:]) if len(allr) > 1 else set()
            if 'permlane' in op: s.w |= allr[1]; s.r |= allr[0]
            if op.startswith(('v_fmac', 'v_dot2c', 'v_writelane')) or 'dpp' in t or 'row_' in t: s.r |= allr[0]
            if op.startswith(('v_add_co', 'v_addc', 'v_sub_co')): s.w |= allr[1]
            if op.startswith('v_cmpx'): s.w.add(('exec', 0))
            if op.startswith('v_cndmask') and len(ops) == 3: s.r.add(('vcc', 0))
        elif s.ds:
            if 'read' in op: s.w = allr[0]; s.r = set().union(*allr[1:])
            else: s.r = set().union(*allr)
        elif s.vmem:
            if s.store or s.dma: s.r = set().union(*allr)
            else: s.w = allr[0]; s.r = set().union(*allr[1:])
            if s.dma: s.r.add(('m0', 0))
        elif s.salu and ops and not op.startswith(('s_cmp', 's_cbranch', 's_branch', 's_waitcnt', 's_nop', 's_barrier')):
            s.w = allr[0]; s.r = set().union(*allr[1:]) if len(allr) > 1 else set()
        s.dpp = s.valu and ('row_' in t or 'quad_perm' in t)
        s.states = (int(ops[0]) + 1) if op == 's_nop' else (0 if (s.label or not op) else 1)
def need(p, c):
    n = 0
    if p.valu:
        vw = {x for x in p.w if x[0] in 'va' and x[0] != 'vcc'}; sw = {x for x in p.w if x[0] in ('s', 'vcc', 'exec')}
        if c.mfma and vw & c.r: n = max(n, 2)
        if c.mfma and ('exec', 0) in p.w: n = max(n, 4)
        if c.valu and vw & c.r:
            if 'permlane' in c.op or c.dpp: n = max(n, 2)
            if 'readlane' in c.op or 'readfirstlane' in c.op: n = max(n, 1)
            if p.op.startswith(TRANS): n = max(n, 1)
            if p.op.startswith('v_dot2'): n = max(n, 3)
        if p.op.startswith('v_dot2') and (c.vmem or c.ds or c.mfma or c.valu) and vw & (c.r | c.w) and c.op != p.op: n = max(n, 3)
        if c.valu and sw & c.r: n = max(n, 4 if 'lane' in c.op else 2)
        if c.vmem and sw & c.r: n = max(n, 5)
        if c.salu and sw & c.r: n = max(n, 1)
    if p.mfma:
        if c.mfma:
            if p.w & c.ab: n = max(n, 12)
            if p.w & c.c and p.w != c.c: n = max(n, 10)
            if p.w & c.w and p.w != c.c and not (p.w & c.c): n = max(n, 10)
        elif p.w & (c.r | c.w): n = max(n, 12)
        if c.valu and p.c & c.w: n = max(n, 7)
    if p.store and ('x4' in p.op or 'x3' in p.op) and (c.valu or c.mfma) and regs(p.ops[0]) & c.w: n = max(n, 2)
    if p.salu and ('m0', 0) in p.w and c.dma: n = max(n, 1)
    if p.salu and ('exec', 0) in p.w and c.dpp: n = max(n, 1)
    return n
class Prog:
    def __init__(s):
        s.L = []; s.vq = []; s.lq = []; s.nid = 0; s.nlab = 0
    def e(s, txt):
        for t in txt.split('\n'):
            if t.strip(): s.L.append(t.strip())
    def vm(s, txt, cond=False):
        s.e(txt); s.nid += 1; s.vq.append((s.nid, cond)); return s.nid
    def lg(s, txt):
        s.e(txt); s.nid += 1; s.lq.append(s.nid); return s.nid
    def wv(s, tok=None):
        if tok is None: s.e('s_waitcnt vmcnt(0)'); s.vq = []; return
        ids = [i for i, _ in s.vq]
        if tok not in ids: return
        k = ids.index(tok); n = sum(1 for i, c in s.vq[k + 1:] if not c)
        s.e(f's_waitcnt vmcnt({min(n, 63)})'); s.vq = s.vq[k + 1:]
    def wl(s, tok=None):
        if tok is None: s.e('s_waitcnt lgkmcnt(0)'); s.lq = []; return
        if tok not in s.lq: return
        k = s.lq.index(tok); n = len(s.lq) - k - 1
        s.e(f's_waitcnt lgkmcnt({min(n, 15)})'); s.lq = s.lq[k + 1:] if n <= 15 else s.lq[-15:]
    def lab(s, p='L'):
        s.nlab += 1; return f'{p}{s.nlab}'
    def finish(s):
        out = []; hist = []; pads = 0
        for t in s.L:
            c = Ins(t); dist = 0; pad = 0
            for p in reversed(hist):
                pad = max(pad, need(p, c) - dist); dist += p.states
                if dist >= 13: break
            if pad > 0:
                nop = f's_nop {pad - 1}'; out.append(nop); hist.append(Ins(nop)); pads += pad
            out.append(t); hist.append(c); hist = hist[-24:]
        return out, pads
```

```python
import sys
from asmlib import Prog
DIAG = 'diag' in sys.argv
KN = "adaLN_cond__sliding_block__glu_gated_glu__prompt_kernel"
P = Prog(); e = P.e
MOD, FKV, FO, FX, FH, DBG, STATS, KV, OB, X1, HB = 0x1000, 0x8000, 0x9000, 0xA000, 0xB000, 0xF00000, 0x10000, 0x100000, 0x500000, 0x700000, 0x900000
VOFF, WO, RA, P4, GAB = 24576, 50176, 115712, 159232, 163328
STG = 98304; P1 = STG; EXC = WO
SX, SQKV, SWO, SWG, SWU, SWD, SOUT, SWS = 's[4:7]', 's[8:11]', 's[12:15]', 's[16:19]', 's[20:23]', 's[24:27]', 's[28:31]', 's[32:35]'
SGU = 's[36:39]'
sG, sN, sW, sTag, sTBG, sT0, sT1, sT2, sCnt, sOne, sHi, sTB3, sKH, sC64, sS0, sS1 = ['s%d' % i for i in range(44, 60)]
sCT = ['s60', 's61', 's62']; sSt = 's63'
def V(a, n=1): return f'v{a}' if n == 1 else f'v[{a}:{a+n-1}]'
def A(a, n=1): return f'a{a}' if n == 1 else f'a[{a}:{a+n-1}]'
vL16, vTR, vDW, vT0, vT1, vT2 = 1, 2, 5, 6, 7, 0
XR = 8; QF = 16; XF = 128
nst = [0]
def stamp():
    if not DIAG: return
    e(f's_memtime s[96:97]\ns_waitcnt lgkmcnt(0)\nv_mov_b32 v6, s96\ns_lshl_b32 s98, s2, 2\ns_add_u32 s98, s98, {sW}\ns_lshl_b32 s98, s98, 7\ns_add_u32 s98, s98, {DBG + 4*nst[0]}\nv_mov_b32 v7, 0')
    P.lq = []
    P.vm(f'buffer_store_dword v6, v7, {SWS}, s98 offen'); nst[0] += 1
def trbase(addr):
    return V(vTR + addr // 65536), addr % 65536
def trread(dst, addr, base=None):
    b, o = trbase(addr) if base is None else (base, addr)
    P.lg(f'ds_read_b64_tr_b16 {V(dst,2)}, {b} offset:{o}')
    P.lg(f'ds_read_b64_tr_b16 {V(dst+2,2)}, {b} offset:{o+256}')
def dma(srd, voff, lds, soff, reg=None):
    def f():
        if isinstance(lds, tuple): e(f's_add_u32 m0, {lds[0]}, {lds[1]}')
        else: e(f's_mov_b32 m0, {lds}')
        e(f's_add_u32 {sT0}, {soff[0]}, {soff[1]}')
        return P.vm(f'buffer_load_dwordx4 {voff}, {srd}, {sT0} offen lds')
    return f
def inter(ms, others):
    k = len(ms); n = len(others)
    for i, m in enumerate(ms):
        e(m)
        for o in others[i*n//k:(i+1)*n//k]:
            o() if callable(o) else e(o)
def poll(loadfn, cmps):
    lp, dn = P.lab('Lp'), P.lab('Ld')
    e(f's_mov_b32 {sCnt}, 400000\n{lp}:'); loadfn(); P.wv()
    e(f'v_cmp_ne_u32 vcc, {sTag}, {cmps[0]}')
    for c in cmps[1:]: e(f'v_cmp_ne_u32 s[98:99], {sTag}, {c}\ns_nop 1\ns_or_b64 vcc, vcc, s[98:99]')
    e(f's_nop 0\ns_cbranch_vccz {dn}\ns_sub_u32 {sCnt}, {sCnt}, 1\ns_cmp_lg_u32 {sCnt}, 0\ns_cbranch_scc1 {lp}\n{dn}:')
def pollflags(base, sidx, n, vt=vT0):
    e(f'v_lshrrev_b32 {V(vT1)}, 2, {V(vL16)}\nv_and_b32 {V(vT1)}, {(n-1)*4}, {V(vT1)}\ns_lshl_b32 {sT1}, {sidx}, 2\ns_add_u32 {sT1}, {sT1}, {base}')
    poll(lambda: P.vm(f'buffer_load_dword {V(vt)}, {V(vT1)}, {SWS}, {sT1} offen sc1'), [V(vt)])
def setflag(base, sidx):
    P.wv()
    e(f's_lshl_b32 {sT1}, {sidx}, 2\ns_add_u32 {sT1}, {sT1}, {base}\nv_mov_b32 {V(vT0)}, {sTag}\nv_mov_b32 {V(vT1)}, 0\ns_mov_b64 exec, 1')
    P.vm(f'buffer_store_dword {V(vT0)}, {V(vT1)}, {SWS}, {sT1} offen sc1'); e('s_mov_b64 exec, -1')
def xhalf(a, b, op):
    e(f'v_mov_b32 {V(b)}, {V(a)}\nv_permlane32_swap_b32 {V(a)}, {V(b)}\n{op} {V(a)}, {V(a)}, {V(b)}')
def dmarow(stride, perm):
    e(f'v_lshrrev_b32 {V(vT0)}, 6, {V(vL16)}')
    if perm:
        e(f'v_and_b32 {V(vT1)}, 3, {V(vT0)}\nv_bfe_u32 {V(vDW)}, {V(vT0)}, 2, 1\nv_lshl_add_u32 {V(vT1)}, {V(vDW)}, 3, {V(vT1)}\nv_lshrrev_b32 {V(vT0)}, 3, {V(vT0)}\nv_lshl_add_u32 {V(vT0)}, {V(vT0)}, 2, {V(vT1)}')
    e(f'v_mul_u32_u24 {V(vT0)}, {stride}, {V(vT0)}\nv_and_b32 {V(vT1)}, 48, {V(vL16)}\nv_add_u32 {V(vDW)}, {V(vT0)}, {V(vT1)}')
def finstats(vs, vq, vR, vM, t):
    e(f'v_mul_f32 {V(vs)}, 0x3b000000, {V(vs)}\nv_mul_f32 {V(vq)}, 0x3b000000, {V(vq)}\nv_fma_f32 {V(vq)}, -{V(vs)}, {V(vs)}, {V(vq)}\nv_max_f32 {V(vq)}, 0, {V(vq)}\nv_add_f32 {V(vq)}, 0x3727c5ac, {V(vq)}')
    e(f'v_rsq_f32 {V(vR)}, {V(vq)}\nv_mul_f32 {V(vM)}, {V(vs)}, {V(vR)}\nv_sub_f32 {V(vM)}, 0, {V(vM)}\nv_mov_b32 {V(vR+1)}, {V(vR)}\nv_mov_b32 {V(vM+1)}, {V(vM)}')
def vtid(dst, sh): e(f's_lshl_b32 {sT0}, {sW}, {6+sh}\nv_lshrrev_b32 {V(dst)}, {4-sh}, {V(vL16)}\nv_add_u32 {V(dst)}, {sT0}, {V(dst)}') if sh <= 4 else None
def params(g4, lds, perm, t):
    e(f'v_lshlrev_b32 {V(t)}, 16, {V(g4)}\nv_and_b32 {V(t+1)}, {sHi}, {V(g4)}\nv_lshlrev_b32 {V(t+2)}, 16, {V(g4+2)}\nv_and_b32 {V(t+3)}, {sHi}, {V(g4+2)}')
    l1 = P.lab('Lq'); e(f's_cmp_lt_u32 {sW}, 2\ns_cbranch_scc1 {l1}')
    for i in range(4): e(f'v_add_f32 {V(t+i)}, 1.0, {V(t+i)}')
    e(f'v_cvt_pk_bf16_f32 {V(t+1)}, {V(t)}, {V(t+1)}\nv_cvt_pk_bf16_f32 {V(t+3)}, {V(t+2)}, {V(t+3)}')
    e(f'v_lshlrev_b32 {V(t)}, 16, {V(t+1)}\nv_and_b32 {V(t+1)}, {sHi}, {V(t+1)}\nv_lshlrev_b32 {V(t+2)}, 16, {V(t+3)}\nv_and_b32 {V(t+3)}, {sHi}, {V(t+3)}\n{l1}:')
    e(f's_and_b32 {sT0}, {sW}, 1\ns_lshl_b32 {sT0}, {sT0}, 11\ns_cmp_lt_u32 {sW}, 2\ns_cselect_b32 {sT1}, 32, 0\ns_add_u32 {sT0}, {sT0}, {sT1}\ns_add_u32 {sT0}, {sT0}, {lds}')
    e(f'v_lshrrev_b32 {V(vT0)}, 6, {V(vL16)}\nv_lshlrev_b32 {V(vT0)}, 7, {V(vT0)}\nv_add_u32 {V(vT0)}, {sT0}, {V(vT0)}')
    if perm: e(f'v_and_b32 {V(vT1)}, 16, {V(vL16)}\nv_lshl_add_u32 {V(vT0)}, {V(vT1)}, 2, {V(vT0)}\nv_and_b32 {V(vT1)}, 32, {V(vL16)}\nv_lshrrev_b32 {V(vT1)}, 1, {V(vT1)}\nv_add_u32 {V(vT0)}, {V(vT0)}, {V(vT1)}')
    else: e(f'v_and_b32 {V(vT1)}, 32, {V(vL16)}\nv_lshl_add_u32 {V(vT0)}, {V(vT1)}, 1, {V(vT0)}\nv_and_b32 {V(vT1)}, 16, {V(vL16)}\nv_add_u32 {V(vT0)}, {V(vT0)}, {V(vT1)}')
    P.lg(f'ds_write_b128 {V(vT0)}, {V(t,4)}')
def rdparams(dst, base, k): return [ (lambda i=i: P.lg(f'ds_read_b128 {V(dst+4*i,4)}, {V(base)} offset:{k*128+16*i}')) for i in range(4)]

e(f's_cmp_ge_u32 s2, 256\ns_cbranch_scc1 Lend\ns_load_dwordx16 s[64:79], s[0:1], 0\ns_load_dwordx8 s[80:87], s[0:1], 64')
e(f'v_lshrrev_b32 v1, 6, v0\ns_nop 0\nv_readfirstlane_b32 {sW}, v1\nv_and_b32 v0, 63, v0\nv_lshlrev_b32 {V(vL16)}, 4, v0')
e(f's_and_b32 {sT0}, s2, 7\ns_lshr_b32 {sT1}, s2, 3\ns_and_b32 {sT2}, {sT1}, 1\ns_lshl_b32 {sG}, {sT0}, 1\ns_add_u32 {sG}, {sG}, {sT2}\ns_lshr_b32 {sN}, {sT1}, 1')
e(f's_lshl_b32 {sT0}, {sT0}, 5\ns_add_u32 {sS0}, {sT0}, {sT1}')
e(f's_lshl_b32 {sTBG}, {sG}, 2\ns_add_u32 {sTBG}, {sTBG}, {sW}\ns_lshr_b32 {sKH}, {sW}, 1\ns_lshr_b32 {sC64}, {sN}, 1')
e(f's_and_b32 {sT0}, {sN}, 1\ns_lshl_b32 {sT0}, {sT0}, 1\ns_and_b32 {sT1}, {sW}, 1\ns_add_u32 {sT0}, {sT0}, {sT1}\ns_lshl_b32 {sTB3}, {sG}, 2\ns_add_u32 {sTB3}, {sTB3}, {sT0}')
e(f's_mov_b32 {sOne}, 0x3f803f80\ns_mov_b32 {sHi}, 0xffff0000')
e(f'v_lshrrev_b32 v6, 5, v0\nv_lshlrev_b32 v2, 9, v6\nv_bfe_u32 v6, v0, 2, 2\nv_lshl_add_u32 v2, v6, 6, v2\nv_bfe_u32 v6, v0, 4, 1\nv_lshl_add_u32 v2, v6, 5, v2\nv_and_b32 v6, 3, v0\nv_lshl_add_u32 v2, v6, 3, v2\nv_add_u32 v3, 0x10000, v2\nv_add_u32 v4, 0x20000, v2')
e('s_waitcnt lgkmcnt(0)')
for i, (srd, p, sz) in enumerate([(4, 64, 2097152), (8, 66, 1572864), (12, 68, 524288), (16, 72, 1409024), (20, 74, 1409024), (24, 76, 1409024), (28, 82, 2097152), (32, 86, 0x1000000), (36, 78, 1024), (40, 80, 3145728)]):
    e(f's_mov_b32 s{srd}, s{p}\ns_and_b32 s{srd+1}, s{p+1}, 0xffff\ns_mov_b32 s{srd+2}, {sz}\ns_mov_b32 s{srd+3}, 0x20000')
e(f'v_mov_b32 v6, 0'); tN = P.vm(f'buffer_load_dword v24, v6, {SWS}, 0 offen sc1')
e(f'v_lshlrev_b32 v6, 1, v0\nv_mul_u32_u24 v7, 6144, v0\ns_min_u32 {sT1}, {sW}, 2\ns_lshl_b32 {sT1}, {sT1}, 8\ns_add_u32 {sS0}, {sS0}, {sT1}\ns_lshl_b32 {sT1}, {sS0}, 3')
for i in range(8): P.vm(f'buffer_load_ushort v{32+i}, v6, s[36:39], 0 offen offset:{128*i}')
for i in range(8):
    e(f's_add_u32 {sT0}, {sT1}, {393216*i}'); tM = P.vm(f'buffer_load_dwordx2 {V(40+2*i,2)}, v7, s[40:43], {sT0} offen')
stamp()
for par in range(2):
    e(f'v_lshrrev_b32 v6, 4, v0\nv_add_u32 v6, {4*par}, v6\nv_and_b32 v7, 7, v0\nv_xor_b32 v6, v6, v7\nv_lshrrev_b32 v7, 3, v0\nv_lshlrev_b32 v7, 10, v7\nv_lshl_add_u32 v{56+par}, v6, 4, v7')
e(f's_lshl_b32 {sS1}, {sW}, 14\ns_add_u32 {sS1}, {sS1}, {STG}')
for q in range(4):
    e(f'v_lshrrev_b32 v6, 5, v0\nv_add_u32 v6, {2*q}, v6\nv_bfe_u32 v7, v0, 1, 3\nv_xor_b32 v6, v6, v7\nv_and_b32 v7, 31, v0\nv_lshlrev_b32 v7, 7, v7\nv_lshl_add_u32 v6, v6, 4, v7\nv_add_u32 v{58+q}, {sS1}, v6')
sXB = 's88'; e(f's_lshl_b32 {sXB}, {sTBG}, 15')
def xround(r):
    for i in range(16): t = dma(SX, V(56 + i % 2), (sS1, i * 1024), (sXB, 8 * (i % 4) * 1024 + r * 512 + (i // 4) * 128))()
    return t
tX0 = xround(0)
e(f'v_and_b32 v6, 31, v0\nv_lshlrev_b32 v6, 10, v6\nv_lshrrev_b32 v7, 5, v0\nv_lshl_add_u32 v62, v7, 4, v6\ns_lshl_b32 s3, {sTB3}, 15\ns_lshl_b32 {sT0}, {sC64}, 7\ns_add_u32 s3, s3, {sT0}\ns_lshl_b32 {sT0}, {sKH}, 6\ns_add_u32 s3, s3, {sT0}')
P.vm(f'buffer_load_dwordx4 {V(XR,4)}, v62, {SX}, s3 offen'); P.vm(f'buffer_load_dwordx4 {V(XR+4,4)}, v62, {SX}, s3 offen offset:32')
dmarow(3072, False)
e(f's_mul_i32 s90, {sW}, {8*16*3072}\ns_lshl_b32 {sT0}, {sN}, 6\ns_add_u32 s90, s90, {sT0}\ns_mul_i32 s91, {sW}, {24*1024}')
for s in range(8):
    for tl in range(3): dma(SQKV, V(vDW), ('s91', (s * 3 + tl) * 1024), ('s90', s * 16 * 3072 + tl * 1024))()
P.wv(tN); e(f'v_readfirstlane_b32 {sTag}, v24\ns_nop 3\ns_mul_i32 {sTag}, {sTag}, 1664525\ns_add_u32 {sTag}, {sTag}, 1013904223\ns_barrier')
P.wv(tM)
for i in range(4): e(f'v_mov_b32 v{24+i}, 0')
for i in range(8):
    c = 32 + i
    e(f'v_lshlrev_b32 v{c}, 16, v{c}\nv_mul_f32 v6, 0xbfb8aa3b, v{c}\nv_exp_f32 v6, v6\ns_nop 0\nv_add_f32 v6, 1.0, v6\nv_rcp_f32 v6, v6\ns_nop 0\nv_mul_f32 v6, v6, v{c}\nv_cvt_pk_bf16_f32 v6, v6, v6\nv_and_b32 v{c}, {sHi}, v6')
    for d in range(2): e(f'v_lshlrev_b32 v6, 16, v{40+2*i+d}\nv_and_b32 v7, {sHi}, v{40+2*i+d}\nv_fmac_f32 v{24+2*d}, v6, v{c}\nv_fmac_f32 v{25+2*d}, v7, v{c}')
for ctl in ['row_shr:1 bound_ctrl:0', 'row_shr:2 bound_ctrl:0', 'row_shr:4 bound_ctrl:0', 'row_shr:8 bound_ctrl:0', 'row_bcast:15 row_mask:0xa', 'row_bcast:31 row_mask:0xc']:
    for i in range(4): e(f'v_add_f32_dpp v{24+i}, v{24+i}, v{24+i} {ctl}')
e(f'v_cvt_pk_bf16_f32 v24, v24, v25\nv_cvt_pk_bf16_f32 v26, v26, v27\nv_mov_b32 v25, {sTag}\nv_mov_b32 v27, {sTag}\nv_mov_b32 v6, 0\ns_lshl_b32 {sT0}, {sS0}, 4\ns_add_u32 {sT0}, {sT0}, {MOD}')
e(f's_cmp_eq_u32 {sW}, 3\ns_cbranch_scc1 Lnopub\ns_mov_b32 exec_lo, 0\ns_mov_b32 exec_hi, 0x80000000')
P.vm(f'buffer_store_dwordx4 v[24:27], v6, {SWS}, {sT0} offen sc1', cond=True); e('s_mov_b64 exec, -1\nLnopub:')
stamp()
for i in range(4): e(f'v_mov_b32 v{28+i}, 0')
for r in range(2):
    P.wv(tX0 if r == 0 else tX1)
    for s in range(16): P.lg(f'ds_read_b128 {V(XF+64*r+4*s,4)}, v{58+s%4} offset:{(s//4)*4096}')
    P.wl()
    if r == 0: tX1 = xround(1)
    for d in range(64): e(f'v_dot2_f32_bf16 v{28+d%2}, v{XF+64*r+d}, {sOne}, v{28+d%2}\nv_dot2_f32_bf16 v{30+d%2}, v{XF+64*r+d}, v{XF+64*r+d}, v{30+d%2}')
e('s_nop 2\nv_add_f32 v28, v28, v29\nv_add_f32 v30, v30, v31'); xhalf(28, 29, 'v_add_f32'); xhalf(30, 31, 'v_add_f32')
finstats(28, 30, 32, 34, 6)
for d in range(128):
    t = 36 + 2 * (d % 4); x = XF + d
    e(f'v_lshlrev_b32 v{t}, 16, v{x}\nv_and_b32 v{t+1}, {sHi}, v{x}\nv_pk_fma_f32 {V(t,2)}, {V(t,2)}, v[32:33], v[34:35]\nv_cvt_pk_bf16_f32 v{x}, v{t}, v{t+1}')
stamp()
vtid(28, 4)
e(f's_mov_b32 {sT1}, {MOD}')
poll(lambda: P.vm(f'buffer_load_dwordx4 v[24:27], v28, {SWS}, {sT1} offen sc1'), ['v25', 'v27'])
e(f's_cmp_lg_u32 {sTBG}, 0\ns_cbranch_scc1 Lnon\ns_cmp_lg_u32 {sN}, 0\ns_cbranch_scc1 Lnon\nv_mov_b32 v6, {sTag}\nv_mov_b32 v7, 0')
P.vm(f'buffer_store_dword v6, v7, {SWS}, 0 offen sc1', cond=True); e('Lnon:\ns_barrier')
params(24, P1, False, 96); P.wl(); e('s_barrier')
stamp()
PB, WB, HF, TM, vPB = 24, 56, 104, 112, 120
def modul(k, xreg, pb, hf, norm=None):
    L = []
    for d in range(4):
        t = TM + 2 * (d % 2)
        L += [f'v_lshlrev_b32 v{t}, 16, v{xreg+d}', f'v_and_b32 v{t+1}, {sHi}, v{xreg+d}']
        if norm: L += [f'v_fma_f32 v{t}, v{t}, v{norm[0]}, v{norm[1]}', f'v_fma_f32 v{t+1}, v{t+1}, v{norm[0]}, v{norm[1]}']
        L += [f'v_fmac_f32 v{pb+8+2*d}, v{t}, v{pb+2*d}', f'v_fmac_f32 v{pb+9+2*d}, v{t+1}, v{pb+1+2*d}', f'v_cvt_pk_bf16_f32 v{hf+d}, v{pb+8+2*d}, v{pb+9+2*d}']
    return L
e(f'v_lshrrev_b32 v{vPB}, 9, {V(vL16)}\nv_lshlrev_b32 v{vPB}, 6, v{vPB}\nv_add_u32 v{vPB+1}, {P4}, v{vPB}\nv_add_u32 v{vPB}, {P1}, v{vPB}')
for f in rdparams(PB, vPB, 0) + rdparams(PB + 16, vPB, 1): f()
for tl in range(3): trread(WB + 4 * tl, tl * 1024)
P.wl()
for t in modul(0, XF, PB, HF): e(t)
for k in range(32):
    P.wl(); wb = WB + 12 * (k % 2); hf = V(HF + 4 * (k % 2), 4); c = lambda tl: (A(16 * tl, 16) if k else '0')
    ms = [f'v_mfma_f32_32x32x16_bf16 {A(0,16)}, {V(wb,4)}, {hf}, {c(0)}', f'v_mfma_f32_32x32x16_bf16 {A(16,16)}, {V(wb+4,4)}, {hf}, {c(1)}', f'v_mfma_f32_32x32x16_bf16 {A(32,16)}, {hf}, {V(wb+8,4)}, {c(2)}']
    o = []
    if k < 31: o += [(lambda tl=tl: trread(WB + 12 * ((k + 1) % 2) + 4 * tl, ((k + 1) * 3 + tl) * 1024)) for tl in range(3)]
    if k < 30: o += rdparams(PB + 16 * (k % 2), vPB, k + 2)
    if k < 31: o += modul(k + 1, XF + 4 * (k + 1), PB + 16 * ((k + 1) % 2), HF + 4 * ((k + 1) % 2))
    inter(ms, o)
stamp()
e('s_barrier')
for r in range(0, 16, 2):
    e(f'v_accvgpr_read_b32 v40, a{16+r}\nv_accvgpr_read_b32 v41, a{17+r}\nv_accvgpr_read_b32 v42, a{32+r}\nv_accvgpr_read_b32 v43, a{33+r}\nv_cvt_pk_bf16_f32 v{24+r//2}, v40, v41\nv_cvt_pk_bf16_f32 v{32+r//2}, v42, v43')
e(f's_lshl_b32 {sT1}, {sTBG}, 16\ns_lshl_b32 {sT2}, {sN}, 12\ns_add_u32 {sT1}, {sT1}, {sT2}\ns_add_u32 {sS0}, {sT1}, {KV}')
for i in range(4): P.vm(f'buffer_store_dwordx4 {V(24+4*i,4)}, {V(vL16)}, {SWS}, {sS0} offen offset:{1024*i} sc1')
vKW, vVW, vKR, vVR = 44, 45, 46, 47
e(f's_lshl_b32 {sT0}, {sW}, 11\nv_add_u32 v{vKR}, {sT0}, {V(vL16)}\ns_mul_i32 {sT1}, {sW}, 2080\ns_add_u32 {sT1}, {sT1}, {VOFF}\nv_add_u32 v{vVW}, {sT1}, {V(vL16)}\ns_add_u32 {sT1}, {sT1}, 1024\nv_mov_b32 v7, {sT1}\nv_and_b32 v6, 256, {V(vL16)}\nv_cmp_eq_u32 vcc, 0, v6\ns_nop 1\nv_cndmask_b32 v{vVR}, v7, v{vVW}, vcc\nv_cndmask_b32 v{vVR+1}, v{vVW}, v7, vcc')
for h in range(2):
    P.lg(f'ds_write_b128 v{vKR}, {V(24+4*h,4)} offset:{16384+1024*h}'); P.lg(f'ds_write_b128 v{vVW}, {V(32+4*h,4)} offset:{16640+1040*h}')
e(f's_lshl_b32 {sT0}, {sG}, 3\ns_sub_i32 {sS1}, 16, {sT0}\ns_max_i32 {sS1}, {sS1}, 0\nv_min_u32 v6, 23, v0\nv_mov_b32 v7, {sOne}\nv_cmp_le_u32 vcc, {sS1}, v6\nv_mul_u32_u24 v6, 1040, v6\nv_cndmask_b32 v40, 0, v7, vcc\nv_mov_b32 v41, v40\nv_mov_b32 v42, v40\nv_mov_b32 v43, v40')
P.lg(f'ds_write_b128 v6, v[40:43] offset:{VOFF+1024}')
for r in range(0, 16, 2):
    e(f'v_accvgpr_read_b32 v40, a{r}\nv_accvgpr_read_b32 v41, a{r+1}\nv_mul_f32 v40, 0x3eb8aa3b, v40\nv_mul_f32 v41, 0x3eb8aa3b, v41\nv_cvt_pk_bf16_f32 v{QF+r//2}, v40, v41')
e(f's_lshl_b32 {sS0}, {sN}, 6\ns_add_u32 {sS0}, {sS0}, {sTBG}'); setflag(FKV, sS0)
stamp()
MK = 224
for r in range(16):
    k0 = 8 * (r // 4) + r % 4
    e(f's_mov_b32 s{64+2*r}, {(0xffffffff << k0) & 0xffffffff}\ns_mov_b32 s{65+2*r}, {(0xffffffff << (k0+4)) & 0xffffffff}')
e(f'v_mov_b32 v6, 0xffff\nv_mov_b32 v7, {sHi}')
for d in range(8): e(f'v_cndmask_b32 v40, 0, v6, s[{64+4*d}:{65+4*d}]\nv_cndmask_b32 v41, 0, v7, s[{66+4*d}:{67+4*d}]\nv_or_b32 v{MK+d}, v40, v41')
e(f's_lshl_b32 {sT0}, {sG}, 2\ns_lshl_b32 {sT1}, {sW}, 1\ns_add_u32 {sT0}, {sT0}, {sT1}\ns_sub_i32 {sS1}, {sT0}, 8\ns_cmp_lt_i32 {sS1}, 0\ns_cbranch_scc1 Lnohalo\ns_lshl_b32 {sS0}, {sN}, 6\ns_add_u32 {sS0}, {sS0}, {sS1}')
pollflags(FKV, sS0, 2)
e(f's_lshl_b32 {sT1}, {sS1}, 16\ns_lshl_b32 {sT2}, {sN}, 12\ns_add_u32 {sT1}, {sT1}, {sT2}\ns_add_u32 {sS0}, {sT1}, {KV}\ns_add_u32 {sS1}, {sS0}, 65536')
tk = [P.vm(f'buffer_load_dwordx4 {V(64+4*i,4)}, {V(vL16)}, {SWS}, {sS0 if i < 4 else sS1} offen offset:{1024*(i%4)} sc1') for i in range(8)]
e(f's_lshl_b32 {sT0}, {sW}, 11\nv_add_u32 v6, {sT0}, v{vKR}\ns_mul_i32 {sT0}, {sW}, 2080\nv_add_u32 v7, {sT0}, v{vVW}')
for i in range(8):
    P.wv(tk[i]); b, m = i // 4, i % 4
    P.lg(f'ds_write_b128 v6, {V(64+4*i,4)} offset:{(2*b+m)*1024}' if m < 2 else f'ds_write_b128 v7, {V(64+4*i,4)} offset:{(2*b+m-2)*1040}')
e('Lnohalo:'); P.wv(); P.wl(); e('s_barrier')
e(f's_cmp_ge_u32 {sG}, 2\ns_cbranch_scc1 Lnofix\ns_lshl_b32 {sT0}, {sG}, 2\ns_sub_u32 {sT0}, 8, {sT0}\ns_lshl_b32 {sT0}, {sT0}, 11\nv_lshrrev_b32 v6, 9, {V(vL16)}\nv_lshlrev_b32 v6, 9, v6\nv_add_u32 v6, {sT0}, v6')
e('ds_read_b128 v[64:67], v6\nds_read_b128 v[68:71], v6 offset:1024\nv_mov_b32 v72, 0\nv_mov_b32 v73, 0\nv_mov_b32 v74, 0\nv_mov_b32 v75, 0\ns_waitcnt lgkmcnt(0)')
for bi in range(2):
    e(f'ds_write_b128 v{vKR}, v[64:67] offset:{8192*bi}\nds_write_b128 v{vKR}, v[68:71] offset:{8192*bi+1024}\nds_write_b128 v{vVW}, v[72:75] offset:{8320*bi}\nds_write_b128 v{vVW}, v[72:75] offset:{8320*bi+1040}')
    if bi == 0: e(f's_cmp_eq_u32 {sG}, 1\ns_cbranch_scc1 Lfix1')
e('Lfix1:\ns_waitcnt lgkmcnt(0)\ns_barrier\nLnofix:')
stamp()
dmarow(1024, True)
e(f's_lshl_b32 s41, {sW}, 17\ns_lshl_b32 {sT0}, {sC64}, 7\ns_add_u32 s41, s41, {sT0}\ns_lshl_b32 s42, {sW}, 14\ns_add_u32 s42, s42, {WO}')
pre = [dma(SWO, V(vDW), ('s42', (s * 2 + tl) * 1024), ('s41', s * 16384 + tl * 64)) for s in range(8) for tl in range(2)]
def w4setup():
    dmarow(2752, True)
    e(f's_and_b32 {sT0}, {sW}, 1\ns_cmp_eq_u32 {sT0}, 1\ns_cselect_b32 s36, s20, s16\ns_cselect_b32 s37, s21, s17\ns_mov_b32 s38, s18\ns_mov_b32 s39, s19')
    e(f's_mul_i32 {sT1}, {sN}, 3\ns_lshl_b32 {sT2}, {sN}, 1\ns_add_u32 {sT2}, {sT2}, 11\ns_cmp_lt_u32 {sN}, 11\ns_cselect_b32 {sT1}, {sT1}, {sT2}\ns_cselect_b32 {sT2}, 128, 0\ns_mov_b32 s40, {sT1}')
    e(f's_lshl_b32 {sT1}, {sT1}, 6\ns_mul_i32 s41, {sKH}, {16*2752}\ns_add_u32 s41, s41, {sT1}\ns_add_u32 s43, s41, {sT2}\ns_mul_i32 s42, {sKH}, 6144\ns_lshl_b32 {sT0}, {sT0}, 10\ns_add_u32 s42, s42, {sT0}')
def w4slot(k, tl, m):
    p = k // 2
    base = RA + p * 12288 if p < 3 else (p - 3) * 12288 if p < 7 else WO + 16384 + (p - 7) * 12288 if p < 11 else WO if p == 11 else RA + (p - 12) * 12288 if p < 15 else 0
    return base + (k % 2) * 6144 + tl * 2048 + m * 1024
def w4pair(p): return [dma(SGU, V(vDW), ('s42', w4slot(2 * p, tl, 0)), ('s41' if tl < 2 else 's43', p * 32 * 2752 + (tl % 2) * 64)) for tl in range(3)]
pre += [w4setup] + w4pair(0) + w4pair(1) + w4pair(2)
KF, SB, SM, NM, PF, VF, OA, MX = 24, 64, 128, 144, 160, 176, 192, 232
KF = 236 - 0
for h in range(2):
    kf = lambda i: V(132 + 0, 4)
    KR = 144 + 0
    kreg = lambda i: A(64 + 4 * i, 4)
    for i in range(9): P.lg(f'ds_read_b128 {kreg(i)}, v{vKR} offset:{(2*i+h)*1024}')
    P.wl()
    q = V(QF + 4 * h, 4); order = [0, 8, 1, 2, 3, 4, 5, 6, 7]
    sb = lambda j: SB + 16 * (j % 4)
    mm = lambda j, c='0': f'v_mfma_f32_32x32x16_bf16 {V(sb(j),16)}, {kreg(order[j])}, {q}, {c}'
    def mx(b, first):
        L = []
        for d in range(8):
            m = MX + d % 2
            L.append(f'v_max_f32 v{m}, v{b+2*d}, v{b+2*d+1}' if (first and d < 2) else f'v_max3_f32 v{m}, v{b+2*d}, v{b+2*d+1}, v{m}')
        return L
    pp = lambda n: [pre.pop(0) for _ in range(min(n, len(pre)))]
    e(mm(0)); e(mm(1)); e(mm(2))
    for f in pp(2): f()
    e(mm(3))
    for r in range(16): e(f'v_cndmask_b32 v{SM+r}, v{sb(0)+r}, v{sb(1)+r}, s[{64+2*r}:{65+2*r}]')
    e(mm(4))
    for t in mx(SM, True): e(t)
    for j in range(2, 9):
        if j + 3 < 9: e(mm(j + 3))
        for t in mx(sb(j), False): e(t)
        for f in pp(1): f()
    e(f'v_max_f32 v{MX}, v{MX}, v{MX+1}'); xhalf(MX, MX + 1, 'v_max_f32')
    for r in range(16): e(f'v_sub_f32 v{NM+r}, 0, v{MX}')
    oa = V(OA + 16 * h, 16); nm = V(NM, 16)
    def vread(i, slot):
        for ks in range(2): P.lg(f'ds_read_b128 {V(VF+8*slot+4*ks,4)}, v{vVR+h} offset:{(2*i+ks)*1040}')
    def expc(b, pf): return [f'v_exp_f32 v{b+r}, v{b+r}' for r in range(16)] + [f'v_cvt_pk_bf16_f32 v{pf+d}, v{b+2*d}, v{b+2*d+1}' for d in range(8)]
    def pv(pf, slot, first): return [f'v_mfma_f32_32x32x16_bf16 {oa}, {V(VF+8*slot+4*ks,4)}, {V(pf+4*ks,4)}, {"0" if (first and ks == 0) else oa}' for ks in range(2)]
    e(mm(2, nm)); vread(0, 0); vread(8, 1); e(mm(3, nm))
    for r in range(16): e(f'v_add_f32 v{SM+r}, v{SM+r}, v{NM+r}')
    for t in expc(SM, PF): e(t)
    for d in range(8): e(f'v_and_b32 v{PF+8+d}, v{MK+d}, v{PF+d}\nv_xor_b32 v{PF+d}, v{PF+d}, v{PF+8+d}')
    P.wl()
    pend = pv(PF, 0, True) + pv(PF + 8, 1, False)
    for j in range(2, 9):
        sl = j % 2; L = expc(sb(j), PF + 8 * sl)
        ms = pend + ([mm(j + 2, nm)] if j + 2 < 9 else [])
        if j == 2:
            for m in pend: e(m)
            ms = ms[len(pend):]
            vread(1, 0); inter(ms, L + pp(2))
        else:
            e(ms[0]); e(ms[1]); vread(j - 1, sl)
            if len(ms) > 2: inter(ms[2:], L + pp(2))
            else: inter([L[0]], L[1:] + pp(2))
        P.wl(); pend = pv(PF + 8 * sl, sl, False)
    for m in pend: e(m)
    lr, o0 = (8, 0) if h == 0 else (0, 8)
    e(f'v_rcp_f32 v6, v{OA+16*h+lr}')
    for d in range(4): e(f'v_mul_f32 v{OA+16*h+o0+2*d}, v6, v{OA+16*h+o0+2*d}\nv_mul_f32 v{OA+16*h+o0+2*d+1}, v6, v{OA+16*h+o0+2*d+1}\nv_cvt_pk_bf16_f32 v{40+d}, v{OA+16*h+o0+2*d}, v{OA+16*h+o0+2*d+1}')
    e(f's_lshl_b32 {sT1}, {sTBG}, 15\ns_lshl_b32 {sT2}, {sN}, 11\ns_add_u32 {sT1}, {sT1}, {sT2}\ns_add_u32 {sT1}, {sT1}, {OB+1024*h}')
    P.vm(f'buffer_store_dwordx4 v[40:43], {V(vL16)}, {SWS}, {sT1} offen sc1')
for f in pre: f()
stamp()
e(f's_lshl_b32 {sS0}, {sTBG}, 4\ns_add_u32 {sS0}, {sS0}, {sN}'); setflag(FO, sS0)
e('s_barrier')
for p in range(3, 7):
    for f in w4pair(p): f()
vtid(28, 4)
e(f's_add_u32 s100, {sKH}, 0\ns_lshl_b32 {sT0}, {sC64}, 8\ns_add_u32 s100, {sT0}, {MOD+4096}\nv_and_b32 v29, 0xf0, {V(vL16)}\nv_and_b32 v6, 256, {V(vL16)}\nv_mul_u32_u24 v6, 24, v6\nv_add_u32 v29, v29, v6')
def ld2():
    e(f's_mov_b32 {sT1}, {MOD+6144}'); P.vm(f'buffer_load_dwordx4 v[24:27], v28, {SWS}, {sT1} offen sc1'); P.vm(f'buffer_load_dwordx4 v[32:35], v29, {SWS}, s100 offen sc1')
poll(ld2, ['v25', 'v27', 'v33', 'v35'])
params(24, P4, True, 96)
e(f'v_lshlrev_b32 v36, 16, v32\nv_and_b32 v37, {sHi}, v32\nv_lshlrev_b32 v38, 16, v34\nv_and_b32 v39, {sHi}, v34\nv_and_b32 v6, 0x1f0, {V(vL16)}')
P.lg(f'v_add_u32 v6, {GAB}, v6\nds_write_b128 v6, v[36:39]')
stamp()
e(f's_lshl_b32 {sS0}, {sTB3}, 4\ns_lshl_b32 {sT0}, {sKH}, 3\ns_add_u32 {sS0}, {sS0}, {sT0}'); pollflags(FO, sS0, 8)
stamp()
e(f's_lshl_b32 {sS0}, {sTB3}, 15\ns_lshl_b32 {sT0}, {sKH}, 14\ns_add_u32 {sS0}, {sS0}, {sT0}\ns_add_u32 {sS0}, {sS0}, {OB}')
to = []
for i in range(16):
    if i % 4 == 0 and i: e(f's_add_u32 {sS0}, {sS0}, 4096')
    to.append(P.vm(f'buffer_load_dwordx4 {A(64+4*i,4)}, {V(vL16)}, {SWS}, {sS0} offen offset:{1024*(i%4)} sc1'))
vKp, vSd, AK, AS, RC = 44, 45, 64, 80, 96
def kbases(stride_kh, base):
    e(f's_mul_i32 {sT0}, {sKH}, {stride_kh+1024}\ns_add_u32 {sT0}, {sT0}, {base}\nv_add_u32 v{vKp}, {sT0}, {V(vTR)}\ns_mul_i32 {sT0}, {sKH}, {stride_kh-1024}\ns_add_u32 {sT0}, {sT0}, {base+1024}\nv_add_u32 v{vSd}, {sT0}, {V(vTR)}')
def gemm35(n, toks, off, hook):
    trread(WB, off(0), V(vKp)); trread(WB + 4, off(0), V(vSd))
    for k in range(n):
        P.wl(); wb = WB + 8 * (k % 2); hk = hook(k)
        if k + 1 < n: trread(WB + 8 * ((k + 1) % 2), off(k + 1), V(vKp))
        P.wv(toks[k])
        e(f'v_mfma_f32_32x32x16_bf16 {V(AK,16)}, {V(wb,4)}, {A(64+4*k,4)}, {V(AK,16) if k else 0}')
        if k + 1 < n: trread(WB + 8 * ((k + 1) % 2) + 4, off(k + 1), V(vSd))
        for f in hk: f()
        e(f'v_mfma_f32_32x32x16_bf16 {V(AS,16)}, {V(wb+4,4)}, {A(64+4*k,4)}, {V(AS,16) if k else 0}')
def exchange(gofs, pre_f):
    e('s_barrier')
    for f in pre_f: f()
    e(f's_lshl_b32 {sT0}, {sW}, 12\ns_add_u32 {sT0}, {sT0}, {EXC}\nv_add_u32 v6, {sT0}, {V(vL16)}\nv_xor_b32 {sT0 and "v7"}, 0x2000, v6' if EXC % 16384 == 0 else f's_lshl_b32 {sT0}, {sW}, 12\ns_xor_b32 {sT1}, {sT0}, 0x2000\ns_add_u32 {sT0}, {sT0}, {EXC}\ns_add_u32 {sT1}, {sT1}, {EXC}\nv_add_u32 v6, {sT0}, {V(vL16)}\nv_add_u32 v7, {sT1}, {V(vL16)}')
    for i in range(4): P.lg(f'ds_write_b128 v6, {V(AS+4*i,4)} offset:{1024*i}')
    e(f's_lshl_b32 {sT0}, {sKH}, 7\ns_add_u32 {sT0}, {sT0}, {GAB+gofs}\nv_lshrrev_b32 v6, 9, {V(vL16)}\nv_lshlrev_b32 v6, 4, v6\nv_add_u32 v6, {sT0}, v6')
    for i in range(4): P.lg(f'ds_read_b128 {V(112+4*i,4)}, v6 offset:{32*i}')
    P.wl(); e('s_barrier')
    for i in range(4): P.lg(f'ds_read_b128 {V(RC+4*i,4)}, v7 offset:{1024*i}')
    P.wl()
    for d in range(8):
        x = XR + d
        e(f'v_add_f32 v{AK+2*d}, v{AK+2*d}, v{RC+2*d}\nv_add_f32 v{AK+2*d+1}, v{AK+2*d+1}, v{RC+2*d+1}\nv_lshlrev_b32 v{RC+2*d}, 16, v{x}\nv_and_b32 v{RC+2*d+1}, {sHi}, v{x}')
        e(f'v_fmac_f32 v{RC+2*d}, v{AK+2*d}, v{112+2*d}\nv_fmac_f32 v{RC+2*d+1}, v{AK+2*d+1}, v{113+2*d}\nv_cvt_pk_bf16_f32 v{x}, v{RC+2*d}, v{RC+2*d+1}')
def swapx():
    for b in (0, 4): e(f'v_permlane32_swap_b32 v{XR+b}, v{XR+b+2}\nv_permlane32_swap_b32 v{XR+b+1}, v{XR+b+3}')
WB = 24; swapx(); kbases(32768, WO)
P.wl(); e('s_barrier')
gemm35(16, to, lambda k: k * 2048, lambda k: [])
stamp()
exchange(0, [f for p in range(7, 11) for f in w4pair(p)])
e(f's_lshl_b32 {sS0}, {sTB3}, 15\ns_lshl_b32 {sT0}, {sC64}, 12\ns_add_u32 {sS0}, {sS0}, {sT0}\ns_lshl_b32 {sT0}, {sKH}, 11\ns_add_u32 {sS0}, {sS0}, {sT0}\ns_add_u32 {sS0}, {sS0}, {X1}')
for i in range(2): P.vm(f'buffer_store_dwordx4 {V(XR+4*i,4)}, {V(vL16)}, {SWS}, {sS0} offen offset:{1024*i} sc1')
e(f'v_add_f32 v24, v{RC}, v{RC+1}\nv_mul_f32 v26, v{RC}, v{RC}\nv_fmac_f32 v26, v{RC+1}, v{RC+1}')
for r in range(2, 16): e(f'v_add_f32 v24, v24, v{RC+r}\nv_fmac_f32 v26, v{RC+r}, v{RC+r}')
xhalf(24, 25, 'v_add_f32'); xhalf(26, 27, 'v_add_f32')
e(f'v_mov_b32 v25, v26\ns_lshl_b32 {sS0}, {sTB3}, 12\ns_lshl_b32 {sT0}, {sC64}, 9\ns_add_u32 {sS0}, {sS0}, {sT0}\ns_lshl_b32 {sT0}, {sKH}, 3\ns_add_u32 {sS0}, {sS0}, {sT0}\ns_add_u32 {sS0}, {sS0}, {STATS}\nv_and_b32 v6, 0x1f0, {V(vL16)}')
P.vm(f'buffer_store_dwordx2 v[24:25], v6, {SWS}, {sS0} offen sc1')
e(f's_lshl_b32 {sS0}, {sTB3}, 4\ns_lshl_b32 {sT0}, {sC64}, 1\ns_add_u32 {sS0}, {sS0}, {sT0}\ns_add_u32 {sS0}, {sS0}, {sKH}'); setflag(FX, sS0)
e('s_barrier')
for f in w4pair(11): f()
stamp()
e(f's_lshl_b32 {sS0}, {sTBG}, 4'); pollflags(FX, sS0, 16)
stamp()
e(f's_lshl_b32 {sS0}, {sTBG}, 12\ns_add_u32 {sS0}, {sS0}, {STATS}\nv_and_b32 v6, 0x1f0, {V(vL16)}\nv_and_b32 v7, 0x200, {V(vL16)}\nv_lshl_add_u32 v6, v7, 2, v6')
for i in range(4): ts = P.vm(f'buffer_load_dwordx4 {V(24+4*i,4)}, v6, {SWS}, {sS0} offen offset:{512*i} sc1')
e(f's_lshl_b32 {sS0}, {sTBG}, 15\ns_add_u32 {sS0}, {sS0}, {X1}')
tx = []
for i in range(32):
    if i % 4 == 0 and i: e(f's_add_u32 {sS0}, {sS0}, 4096')
    tx.append(P.vm(f'buffer_load_dwordx4 {V(XF+4*i,4)}, {V(vL16)}, {SWS}, {sS0} offen offset:{1024*(i%4)} sc1'))
e('s_barrier')
P.wv(ts)
for i in range(1, 8): e(f'v_add_f32 v24, v24, v{24+2*i}\nv_add_f32 v25, v25, v{25+2*i}')
xhalf(24, 26, 'v_add_f32'); xhalf(25, 26, 'v_add_f32'); finstats(24, 25, 116, 118, 6)
vP4 = vPB + 1; WB = 56
e(f'v_lshrrev_b32 v{vP4}, 9, {V(vL16)}\nv_lshlrev_b32 v{vP4}, 6, v{vP4}\nv_add_u32 v{vP4}, {P4}, v{vP4}')
for f in rdparams(PB, vP4, 0) + rdparams(PB + 16, vP4, 1): f()
for i in range(6): trread(WB + 4 * i, w4slot(0, i // 2, i % 2))
P.wl(); P.wv(tx[0])
for t in modul(0, XF, PB, HF, (116, 118)): e(t)
vD5 = 122
def w5setup():
    e(f'v_lshrrev_b32 v6, 6, {V(vL16)}\nv_and_b32 v7, 3, v6\nv_bfe_u32 v{vD5}, v6, 2, 1\nv_lshl_add_u32 v7, v{vD5}, 3, v7\nv_lshrrev_b32 v6, 3, v6\nv_lshl_add_u32 v6, v6, 2, v7\nv_lshlrev_b32 v6, 10, v6\nv_and_b32 v7, 48, {V(vL16)}\nv_add_u32 v{vD5}, v6, v7')
    e(f's_mul_i32 s94, {sKH}, {43*16384}\ns_lshl_b32 {sT0}, {sC64}, 7\ns_add_u32 s94, s94, {sT0}\ns_and_b32 {sT0}, {sW}, 1\ns_lshl_b32 {sT0}, {sT0}, 6\ns_add_u32 s94, s94, {sT0}\ns_lshl_b32 s95, {sW}, 10')
def w5slot(i): return 12288 + i * 4096 if i < 9 else WO + 16384 + (i - 9) * 4096 if i < 21 else WO + (i - 21) * 4096 if i < 25 else RA + (i - 25) * 4096 if i < 35 else (i - 35) * 4096 if i < 38 else 12288 + (i - 38) * 4096
w5 = lambda a, b: [dma(SWD, V(vD5), ('s95', w5slot(i)), ('s94', i * 16384)) for i in range(a, b)]
sched = {6: w4pair(12) + w4pair(13) + w4pair(14), 14: w4pair(15) + [w5setup] + w5(0, 9), 22: w5(9, 21), 24: w5(21, 25), 30: w5(25, 35)}
pre = []; lastw4 = {}
for k in range(32):
    P.wl()
    if k + 1 in sched:
        if k + 1 == 24: P.wv(lastw4[14])
        if k + 1 == 30: P.wv(lastw4[15])
        e('s_barrier'); pre += sched[k + 1]
    wb = WB + 24 * (k % 2); hf = V(HF + 4 * (k % 2), 4)
    ms = [f'v_mfma_f32_32x32x16_bf16 {A(16*i,16)}, {V(wb+4*i,4)}, {hf}, {A(16*i,16) if k else 0}' for i in range(6)]
    o = []
    if k < 31: o += [(lambda i=i: trread(WB + 24 * ((k + 1) % 2) + 4 * i, w4slot(k + 1, i // 2, i % 2))) for i in range(6)]
    if k < 30: o += rdparams(PB + 16 * (k % 2), vP4, k + 2)
    if k < 31: o += [lambda: P.wv(tx[k + 1])] + modul(k + 1, XF + 4 * (k + 1), PB + 16 * ((k + 1) % 2), HF + 4 * ((k + 1) % 2), (116, 118))
    for _ in range(2):
        if pre: o.append(pre.pop(0))
    inter(ms, o)
    if k == 10: lastw4[14] = P.nid - 0 if False else None
    if k == 10: lastw4[14] = P.vq[-1][0]
    if k == 15: lastw4[15] = P.vq[-1][0]
for f in pre: f()
stamp()
e('s_barrier')
for f in w5(35, 38): f()
e(f's_mul_i32 {sS0}, {sTBG}, {86*1024}\ns_lshl_b32 {sT0}, s40, 11\ns_add_u32 {sS0}, {sS0}, {sT0}\ns_add_u32 {sS0}, {sS0}, {HB}')
for tl in range(3):
    if tl == 2: e(f's_cmp_ge_u32 {sN}, 11\ns_cbranch_scc1 Lno3')
    for r in range(0, 16, 2):
        t = 24 + 4 * ((r // 2) % 2)
        for i in range(2): e(f'v_accvgpr_read_b32 v{t+i}, a{32*tl+r+i}\nv_accvgpr_read_b32 v{t+2+i}, a{32*tl+16+r+i}')
        for i in range(2): e(f'v_mul_f32 v{t+i}, 0xbfb8aa3b, v{t+i}')
        for i in range(2): e(f'v_exp_f32 v{t+i}, v{t+i}')
        for i in range(2): e(f'v_add_f32 v{t+i}, 1.0, v{t+i}')
        for i in range(2): e(f'v_rcp_f32 v{t+i}, v{t+i}')
        for i in range(2): e(f'v_mul_f32 v{t+i}, v{t+i}, v{t+2+i}')
        e(f'v_cvt_pk_bf16_f32 v{32+8*tl+r//2}, v{t}, v{t+1}')
    e(f's_add_u32 {sT1}, {sS0}, {2048*tl}')
    for i in range(2): P.vm(f'buffer_store_dwordx4 {V(32+8*tl+4*i,4)}, {V(vL16)}, {SWS}, {sT1} offen offset:{1024*i} sc1', cond=(tl == 2))
e('Lno3:')
e(f's_lshl_b32 {sS0}, {sTBG}, 4\ns_add_u32 {sS0}, {sS0}, {sN}'); setflag(FH, sS0)
stamp()
e(f's_lshl_b32 {sS0}, {sTB3}, 4'); pollflags(FH, sS0, 16)
stamp()
e(f's_mul_i32 {sS0}, {sTB3}, {86*1024}\ns_mul_i32 {sT0}, {sKH}, {43*1024}\ns_add_u32 {sS0}, {sS0}, {sT0}\ns_add_u32 {sS0}, {sS0}, {HB}')
th = []
for i in range(43):
    if i % 4 == 0 and i: e(f's_add_u32 {sS0}, {sS0}, 4096')
    th.append(P.vm(f'buffer_load_dwordx4 {A(64+4*i,4)}, {V(vL16)}, {SWS}, {sS0} offen offset:{1024*(i%4)} sc1'))
kbases(2048, 0)
e(f'v_add_u32 v46, 0x10000, v{vKp}\nv_add_u32 v47, 0x10000, v{vSd}\nv_add_u32 v48, 0x20000, v{vKp}\nv_add_u32 v49, 0x20000, v{vSd}\ns_barrier')
_tr = trread
def trread(dst, addr, base):
    r = int(base[1:]) + 2 * (addr // 65536); _tr(dst, addr % 65536, V(r))
late = []
def hook5(k):
    global late
    if k == 8: e('s_barrier'); late = w5(38, 43)
    if k == 37: P.wv(P.vq[-1][0]); e('s_barrier')
    return [late.pop(0)] if late else []
WB = 24
gemm35(43, th, w5slot, hook5)
stamp()
exchange(256, [])
swapx()
e(f'v_and_b32 v6, 0x1f0, {V(vL16)}\nv_lshlrev_b32 v6, 6, v6\nv_lshrrev_b32 v7, 9, {V(vL16)}\nv_lshl_add_u32 v62, v7, 4, v6')
P.vm(f'buffer_store_dwordx4 {V(XR,4)}, v62, {SOUT}, s3 offen'); P.vm(f'buffer_store_dwordx4 {V(XR+4,4)}, v62, {SOUT}, s3 offen offset:32')
stamp()
e('s_waitcnt vmcnt(0)\nLend:')
body, pads = P.finish()
hdr = f'; @launch grid=(256,1,1) block=(256,1,1) lds=163840\n.amdgcn_target "amdgcn-amd-amdhsa--gfx950"\n.text\n.globl {KN}\n.p2align 8\n.type {KN},@function\n{KN}:\n'
ftr = f's_endpgm\n.section .rodata,"a"\n.p2align 6\n.amdhsa_kernel {KN}\n  .amdhsa_next_free_vgpr 512\n  .amdhsa_next_free_sgpr 102\n  .amdhsa_accum_offset 256\n  .amdhsa_group_segment_fixed_size 0\n  .amdhsa_kernarg_size 96\n  .amdhsa_user_sgpr_count 2\n  .amdhsa_user_sgpr_kernarg_segment_ptr 1\n  .amdhsa_system_sgpr_workgroup_id_x 1\n.end_amdhsa_kernel\n'
out = sys.argv[1]
open(out, 'w').write(hdr + '\n'.join(body) + '\n' + ftr)
print(out, len(body), 'lines, pad states', pads, 'stamps', nst[0])
```
